```python
import torch

def _softmax(x, axis=-1):
    return torch.softmax(x, dim=axis)
def _gelu(x):
    return torch.nn.functional.gelu(x, approximate="tanh")
def _silu(x):
    return torch.nn.functional.silu(x)
def _sigmoid(x):
    return torch.sigmoid(x)
def _layernorm(x, axis=-1, eps=1e-5):
    m = x.mean(dim=axis, keepdim=True)
    v = x.var(dim=axis, keepdim=True, unbiased=False)
    return (x - m) / torch.sqrt(v + eps)
def _scatter_add(tgt, idx, src, axis=0):
    return tgt.clone().index_add_(axis, idx, src)
def _segment_sum(src, seg, n):
    out = torch.zeros((n,) + src.shape[1:], dtype=src.dtype)
    return out.index_add_(0, seg, src)
def _pad(x, pw):
    flat = tuple(v for pair in reversed(pw) for v in pair)
    return torch.nn.functional.pad(x, flat)

kernel_name = 'gated_mix__mha_block_cached__glu_gated_swiglu__decode'

def setup_inputs():

    _w = (lambda a: (lambda t: t.to(torch.bfloat16) if t.is_floating_point() else t)(torch.as_tensor(a)))
    def _A_setup():
        B, Sq, D = 4, 1, 512
        H, Sk, Dh = 32, 8192, 128
        return {
            "x": _w((lambda *s: torch.randn(*s, dtype=torch.bfloat16) * 0.05)(B, Sq, D)),
            "k_cache": _w((lambda *s: torch.randn(*s, dtype=torch.bfloat16) * 6.4)(B, H, Sk, Dh)),
            "v_cache": _w((lambda *s: torch.randn(*s, dtype=torch.bfloat16) * 0.2)(B, H, Sk, Dh)),
            "wq": _w((lambda *s: torch.randn(*s, dtype=torch.bfloat16) * 6.4)(D, H * Dh) * (D ** -0.5)),
            "wo": _w((lambda *s: torch.randn(*s, dtype=torch.bfloat16) * 0.2)(H * Dh, D) * ((H * Dh) ** -0.5)),
        }
    _A_in = _A_setup()

    def _B_setup():
        B, S, D, F = 4, 1, 512, 1792
        return {
            "x": _w((lambda *s: torch.randn(*s, dtype=torch.bfloat16) * 0.05)(B, S, D)),
            "w1": _w((lambda *s: torch.randn(*s, dtype=torch.bfloat16) * 0.8)(D, F) * (2.0 / D) ** 0.5),
            "w3": _w((lambda *s: torch.randn(*s, dtype=torch.bfloat16) * 0.8)(D, F) * (2.0 / D) ** 0.5),
            "w2": _w((lambda *s: torch.randn(*s, dtype=torch.bfloat16) * 0.8)(F, D) * (2.0 / F) ** 0.5),
        }
    _B_in = _B_setup()

    return {
        "A_x": _A_in["x"],
        "A_k_cache": _A_in["k_cache"],
        "A_v_cache": _A_in["v_cache"],
        "A_wq": _A_in["wq"],
        "A_wo": _A_in["wo"],
        "B_x": _B_in["x"],
        "B_w1": _B_in["w1"],
        "B_w3": _B_in["w3"],
        "B_w2": _B_in["w2"],
        "gate_w": _w((lambda *s: torch.randn(*s, dtype=torch.bfloat16) * 0.05)(512) * 16.0),
    }

def reference(A_x, A_k_cache, A_v_cache, A_wq, A_wo, B_x, B_w1, B_w3, B_w2, gate_w):
    def _A_ref(x, k_cache, v_cache, wq, wo):
        B, Sq, D = x.shape
        H, Dh = 32, 128
        q = (lambda x, *d: x.permute(*d))((x @ wq).reshape(B, Sq, H, Dh), 0, 2, 1, 3)
        scores = torch.einsum("bhqd,bhkd->bhqk", q, k_cache) * (Dh ** -0.5)
        p = _softmax(scores, axis=-1)
        o = torch.einsum("bhqk,bhkd->bhqd", p, v_cache)
        return (lambda x, *d: x.permute(*d))(o, 0, 2, 1, 3).reshape(B, Sq, H * Dh) @ wo

    def _B_ref(x, w1, w3, w2):
        gate = torch.einsum("bsd,df->bsf", x, w1)
        up = torch.einsum("bsd,df->bsf", x, w3)
        h = _silu(gate) * up
        out = torch.einsum("bsf,fd->bsd", h, w2)
        return out

    x = A_x
    g = _sigmoid((x * gate_w).sum(-1, keepdims=True))
    a = _A_ref(x, A_k_cache, A_v_cache, A_wq, A_wo)
    b = _B_ref(x, B_w1, B_w3, B_w2)
    return g * a + (1 - g) * b
```

```python
import re
TRANS=('v_exp_f32','v_log_f32','v_rcp_f32','v_rsq_f32','v_sqrt_f32')
def regs(op):
    op=op.strip()
    if op.startswith('-') : op=op[1:]
    op=op.strip('|')
    m=re.fullmatch(r'([vs])(\d+)',op)
    if m: return {(m.group(1),int(m.group(2)))}
    m=re.fullmatch(r'([vs])\[(\d+):(\d+)\]',op)
    if m: return {(m.group(1),i) for i in range(int(m.group(2)),int(m.group(3))+1)}
    if op=='vcc': return {('s',106),('s',107)}
    if op=='exec': return {('s',126),('s',127)}
    return set()
class Asm:
    def __init__(s): s.L=[]; s.hist=[]
    def raw(s,t): s.L.append(t)
    def label(s,t):
        s.L.append(t+':')
    def _age(s,n):
        for h in s.hist: h['age']+=n
        s.hist=[h for h in s.hist if h['age']<6]
    def __call__(s,line):
        for ln in line.strip().split('\n'):
            ln=ln.strip()
            if ln: s.one(ln)
    def one(s,ln):
        code=ln.split(';')[0].strip()
        if not code: s.L.append('    '+ln); return
        parts=code.split(None,1); mn=parts[0]
        rest=parts[1] if len(parts)>1 else ''
        ops=[o.strip() for o in re.split(r',(?![^\[]*\])',rest)]
        if ops:
            last=ops[-1].split()
            mods=' '.join(last[1:]); ops[-1]=last[0] if last else ''
        else: mods=''
        if mn=='s_nop':
            s.L.append('    '+ln); s._age(int(ops[0])+1); return
        isv=mn.startswith('v_'); isvm=mn.startswith('buffer_') or mn.startswith('global_'); isds=mn.startswith('ds_')
        wr=set(); rd=set()
        if isv:
            if 'permlane' in mn: wr=regs(ops[0])|regs(ops[1]); rd=set(wr)
            else:
                wr=regs(ops[0]); k=1
                if '_co_' in mn: wr|=regs(ops[1]); k=2
                for o in ops[k:]: rd|=regs(o)
                if mn.startswith('v_fmac') or mn.startswith('v_dot2c') or '_dpp' in mn or mn.startswith('v_writelane'): rd|=regs(ops[0])
                if mn.startswith('v_cndmask') and len(ops)==3: rd|=regs('vcc')
                if mn.startswith('v_cmpx'): wr|=regs('exec')
        else:
            for o in ops: rd|=regs(o)
        need=0
        dpp='_dpp' in mn
        for h in s.hist:
            a=h['age']; w=h['wr']
            def req(n):
                nonlocal need
                need=max(need,n-a)
            if h['kind']=='valu':
                vw={r for r in w if r[0]=='v'}; sw={r for r in w if r[0]=='s'}
                if isv:
                    if dpp and vw&rd: req(2)
                    if dpp and (('s',126) in sw): req(5)
                    if 'permlane' in mn and vw&rd: req(2)
                    if mn.startswith('v_readlane') or mn.startswith('v_readfirstlane'):
                        if vw&rd: req(1)
                        if sw&rd: req(4)
                        if ('s',126) in sw: req(4)
                    if sw&rd: req(2)
                    if h['mn'] in TRANS and (vw&rd or vw&wr): req(1)
                    if h['mn'].startswith('v_dot2'):
                        if vw&(rd|wr):
                            same = (mn==h['mn'] and len(ops)==4 and not (vw&(regs(ops[1])|regs(ops[2]))))
                            if not same: req(3)
                if isvm or isds:
                    if sw&rd: req(5)
                    if h['mn'].startswith('v_dot2') and vw&rd: req(3)
                    if h['mn'] in TRANS and vw&rd: req(1)
            elif h['kind']=='wstore':
                if isv and w&wr: req(2)
                if (isvm or isds) and 'load' in mn+('load' if 'read' in mn else '') and w&regs(ops[0]): req(1)
        if need>0:
            s.L.append(f'    s_nop {need-1}'); s._age(need)
        s.L.append('    '+ln)
        s._age(1)
        if isv: s.hist.append(dict(kind='valu',wr=wr,mn=mn,age=0))
        if isvm and 'store' in mn and ('x4' in mn or 'x3' in mn): s.hist.append(dict(kind='wstore',wr=regs(ops[0]),mn=mn,age=0))
        if isds and 'write' in mn and ('b128' in mn or 'b96' in mn): s.hist.append(dict(kind='wstore',wr=regs(ops[1]),mn=mn,age=0))
    def text(s): return '\n'.join(s.L)+'\n'
```

```python
import sys, struct
from asmlib import Asm
NAME='gated_mix__mha_block_cached__glu_gated_swiglu__decode'
def f2u(x): return struct.unpack('<I',struct.pack('<f',x))[0]
import math
CS=128**-0.5*math.log2(math.e)
LOG2E=math.log2(math.e)

QP=0
GU=8448
ML=12288
BIG=16384
BS=2064
LDS=BIG+16*BS

KB=16; VB=32; WB=48; W13=80; W2=96; ACC=104; Q=112; M=116; Lr=117; XQ=118; XF=122; XS=124
NT='nt'

def gen(stamps=False):
    a=Asm()
    hdr=open('cdna_kernels/%s.s.ref'%NAME).read().split('\n')
    for ln in hdr:
        if ln.startswith('; @launch'): a.raw(f'; @launch grid=(256,1,1) block=(1024,1,1) lds={LDS}')
        elif ln.startswith(';'): a.raw(ln)
        else: break
    a.raw('.amdgcn_target "amdgcn-amd-amdhsa--gfx950"'); a.raw('.text'); a.raw(f'.globl {NAME}_kernel'); a.raw('.p2align 8')
    a.raw(f'.type {NAME}_kernel,@function'); a.label(f'{NAME}_kernel')
    a('''
    s_cmp_ge_u32 s2, 256
    s_cbranch_scc1 L_end
    s_load_dwordx16 s[4:19], s[0:1], 0
    s_load_dwordx8 s[20:27], s[0:1], 64
    s_load_dwordx2 s[28:29], s[0:1], 96
    v_lshrrev_b32 v1, 6, v0
    v_and_b32 v4, 63, v0                 ; lane
    v_readfirstlane_b32 s3, v1
    v_lshlrev_b32 v1, 4, v4              ; lane*16
    v_lshrrev_b32 v5, 4, v4              ; r
    v_and_b32 v6, 15, v4                 ; c
    ; workgroup -> (b,h,s)
    s_and_b32 s82, s2, 7                 ; x
    s_lshr_b32 s83, s2, 3                ; i
    s_and_b32 s78, s83, 1                ; s
    s_lshr_b32 s77, s83, 1
    s_and_b32 s77, s77, 3
    s_lshl_b32 s77, s77, 3
    s_add_u32 s77, s77, s82              ; h
    s_lshr_b32 s76, s83, 3               ; b
    s_and_b32 s84, s83, 7                ; f
    s_cmp_lt_u32 s84, 7
    s_cselect_b32 s92, 1.0, 0
    s_min_u32 s84, s84, 6
    s_mul_i32 s79, s82, 7
    s_add_u32 s79, s79, s84
    s_lshl_b32 s93, s77, 1
    s_add_u32 s93, s93, s78              ; p = 2h+s
    s_lshl_b32 s85, s76, 6
    s_add_u32 s85, s85, s93
    s_lshl_b32 s86, s85, 20
    s_lshr_b32 s87, s85, 12
    s_mov_b32 s35, 0x20000
    s_mov_b32 s39, 0x20000
    s_mov_b32 s43, 0x20000
    s_mov_b32 s47, 0x20000
    s_mov_b32 s51, 0x20000
    s_mov_b32 s55, 0x20000
    s_mov_b32 s59, 0x20000
    s_mov_b32 s63, 0x20000
    s_mov_b32 s67, 0x20000
    s_mov_b32 s71, 0x20000
    s_mov_b32 s75, 0x20000
    s_mov_b32 s34, 0x100000
    s_mov_b32 s38, 0x100000
    s_mov_b32 s42, 0x400000
    s_mov_b32 s46, 0x400000
    s_mov_b32 s50, 0x1000
    s_mov_b32 s54, 0x1c0000
    s_mov_b32 s58, 0x1c0000
    s_mov_b32 s62, 0x200000
    s_mov_b32 s66, 0x100
    s_mov_b32 s70, 0x1000
    s_mov_b32 s74, 0x400
    ''')
    a(f'''
    v_lshlrev_b32 v7, 16, v5             ; r*8*8192
    v_lshl_add_u32 v7, v6, 4, v7
    s_lshl_b32 s88, s3, 18               ; w*32*8192
    s_lshl_b32 s89, s77, 8
    s_add_u32 s88, s88, s89
    v_add_u32 v7, s88, v7
    ; x for q: b*1024 + (w*32 + r*8)*2
    s_lshl_b32 s89, s76, 10
    s_lshl_b32 s90, s3, 6
    s_add_u32 s90, s90, s89
    v_lshlrev_b32 v8, 4, v5
    v_add_u32 v8, s90, v8
    s_and_b32 s91, s3, 7
    v_lshrrev_b32 v9, 2, v4
    v_and_b32 v10, 3, v4
    v_mul_u32_u24 v11, 14336, v9
    v_lshl_add_u32 v11, v10, 4, v11
    s_mul_i32 s94, s91, 229376
    s_lshl_b32 s95, s79, 6
    s_add_u32 s94, s94, s95
    v_add_u32 v11, s94, v11              ; w13 voffset
    s_lshl_b32 s95, s91, 7
    s_add_u32 s95, s95, s89
    v_lshlrev_b32 v12, 3, v9
    v_add_u32 v12, s95, v12
    s_lshl_b32 s96, s79, 15
    s_lshl_b32 s97, s3, 11
    s_add_u32 s96, s96, s97              ; w2 soffset
    s_lshl_b32 s98, s77, 17
    s_lshl_b32 s97, s3, 13
    s_add_u32 s98, s98, s97
    s_add_u32 s99, s98, 4096
    s_lshl_b32 s100, s76, 18
    s_lshl_b32 s97, s93, 6
    s_add_u32 s100, s100, s97            ; b*262144 + p*64
    v_lshrrev_b32 v13, 2, v0
    v_lshlrev_b32 v13, 12, v13
    v_lshl_add_u32 v13, v10, 4, v13
    v_add_u32 v13, s100, v13
    v_lshrrev_b32 v2, 3, v4
    v_lshlrev_b32 v2, 12, v2
    v_and_b32 v3, 1, v9
    v_lshl_add_u32 v2, v3, 4, v2
    s_lshl_b32 s97, s91, 15
    s_add_u32 s97, s97, s100
    v_add_u32 v2, s97, v2
    v_mul_u32_u24 v3, {4*BS}, v10
    v_lshl_add_u32 v3, v9, 4, v3
    s_lshl_b32 s97, s91, 8
    s_add_u32 s97, s97, {BIG}
    v_add_u32 v3, s97, v3
    v_mov_b32 v{KB}, -1
    v_mov_b32 v{KB+1}, -1
    v_mov_b32 v{KB+2}, -1
    v_mov_b32 v{KB+3}, -1
    s_lshl_b32 s81, s3, 12
    s_movk_i32 s88, 3584
    s_movk_i32 s89, 7168
    s_movk_i32 s90, 10752
    s_lshl_b32 s101, s85, 2
    s_add_u32 s101, s101, 0x100000
    s_waitcnt lgkmcnt(0)
    s_mov_b32 s60, s28
    s_mov_b32 s61, s29
    s_mov_b32 s48, s4
    s_mov_b32 s49, s5
    s_mov_b32 s40, s10
    s_mov_b32 s41, s11
    s_cmp_ge_u32 s3, 4
    s_cbranch_scc1 L_noclr
    buffer_store_dwordx4 v[{KB}:{KB+3}], v13, s[60:63], 0 offen sc1
    ''')
    a.label('L_noclr')
    a(f'''
    s_cmp_lg_u32 s3, 4
    s_cbranch_scc1 L_noclr2
    s_mov_b64 exec, 1
    buffer_store_dword v{KB}, off, s[60:63], s101 sc1
    s_mov_b64 exec, -1
    ''')
    a.label('L_noclr2')
    a(f'''
    buffer_load_dwordx4 v[{XQ}:{XQ+3}], v8, s[48:51], 0 offen
    buffer_load_dwordx2 v[{XF}:{XF+1}], v12, s[48:51], 0 offen
    s_movk_i32 s82, 0x2000
    s_movk_i32 s83, 0x4000
    s_movk_i32 s84, 0x6000
    v_add_u32 v14, 0x8000, v7
    ''')
    for j in range(8):
        so=['0','s82','s83','s84'][j%4]; va='v7' if j<4 else 'v14'
        a(f'buffer_load_dwordx4 v[{WB+4*j}:{WB+4*j+3}], {va}, s[40:43], {so} offen')
    a('''
    s_cmp_lt_u32 s3, 8
    s_cselect_b32 s52, s16, s18
    s_cselect_b32 s53, s17, s19
    s_mov_b32 s56, s20
    s_mov_b32 s57, s21
    s_add_u32 s32, s6, s86
    s_addc_u32 s33, s7, s87
    s_add_u32 s36, s8, s86
    s_addc_u32 s37, s9, s87
    ''')
    for j in range(4):
        so=['0','s88','s89','s90'][j]
        a(f'buffer_load_dwordx4 v[{W13+4*j}:{W13+4*j+3}], v11, s[52:55], {so} offen')
    for j in range(2):
        a(f'buffer_load_dwordx4 v[{W2+4*j}:{W2+4*j+3}], v1, s[56:59], s96 offen offset:{1024*j}')
    def ldk(j): a(f'buffer_load_dwordx4 v[{KB+4*j}:{KB+4*j+3}], v1, s[32:35], s81 offen offset:{1024*j} {NT}')
    def ldv(j): a(f'buffer_load_dwordx4 v[{VB+4*j}:{VB+4*j+3}], v1, s[36:39], s81 offen offset:{1024*j} {NT}')
    a('s_nop 0')
    for j in range(4): ldk(j)
    for j in range(4): ldv(j)
    a('''
    s_mov_b32 s44, s12
    s_mov_b32 s45, s13
    s_mov_b32 s64, s26
    s_mov_b32 s65, s27
    s_mov_b32 s68, s24
    s_mov_b32 s69, s25
    s_mov_b32 s72, s22
    s_mov_b32 s73, s23
    s_mov_b32 s86, 0xffff0000
    s_mov_b32 s87, 0xffff
    ''')
    def dotrow(acc, wreg, xreg, hi, first):
        if hi:
            a(f'v_lshrrev_b32 v{XS}, 16, v{xreg}'); a(f'v_and_b32 v{XS+1}, s86, v{xreg}')
        else:
            a(f'v_and_b32 v{XS}, s87, v{xreg}'); a(f'v_lshlrev_b32 v{XS+1}, 16, v{xreg}')
        for d in range(4):
            for e in range(2):
                c='0' if first else f'v{acc+2*d+e}'
                a(f'v_dot2_f32_bf16 v{acc+2*d+e}, v{wreg+d}, v{XS+e}, {c}')
    for j in range(8):
        a(f's_waitcnt vmcnt({7-j+14})')
        dotrow(ACC, WB+4*j, XQ+j//2, j&1, j==0)
    def rscatter(acc):
        for i in range(4): a(f'v_permlane32_swap_b32 v{acc+i}, v{acc+4+i}')
        for i in range(4): a(f'v_add_f32 v{acc+i}, v{acc+i}, v{acc+4+i}')
        for i in range(2): a(f'v_permlane16_swap_b32 v{acc+i}, v{acc+2+i}')
        for i in range(2): a(f'v_add_f32 v{acc+i}, v{acc+i}, v{acc+2+i}')
    rscatter(ACC)
    a(f'''
    v_lshlrev_b32 v7, 5, v6
    v_lshl_add_u32 v7, v5, 3, v7
    s_lshl_b32 s97, s3, 9
    v_add_u32 v8, s97, v7
    ds_write_b64 v8, v[{ACC}:{ACC+1}] offset:{QP}
    ''')
    for k in range(8):
        a(f'buffer_load_dwordx4 v[{WB+4*k}:{WB+4*k+3}], v1, s[44:47], {"s98" if k<4 else "s99"} offen offset:{1024*(k%4)}')
    for j in range(4):
        a(f's_waitcnt vmcnt({3-j+18})')
        dotrow(ACC, W13+4*j, XF+j//2, j&1, j==0)
    rscatter(ACC)
    for rr in (4,8):
        for i in range(2): a(f'v_add_f32_dpp v{ACC+i}, v{ACC+i}, v{ACC+i} row_ror:{rr} row_mask:0xf bank_mask:0xf')
    a(f'''
    v_lshlrev_b32 v8, 5, v10
    v_lshl_add_u32 v8, v5, 3, v8
    s_mul_i32 s97, s3, 136
    v_add_u32 v8, s97, v8
    ds_write_b64 v8, v[{ACC}:{ACC+1}] offset:{GU}
    v_lshlrev_b32 v8, 11, v5
    v_lshl_add_u32 v8, v6, 5, v8
    v_mul_u32_u24 v9, 136, v6
    s_lshl_b32 s97, s3, 3
    v_add_u32 v9, s97, v9
    s_waitcnt lgkmcnt(0)
    s_barrier
    ''')
    T=W13
    for k in range(4):
        a(f'ds_read_b128 v[{T+4*k}:{T+4*k+3}], v8 offset:{QP+512*k}')
    a(f'ds_read_b128 v[{ACC+4}:{ACC+7}], v8 offset:{QP+16}')
    a(f'ds_read_b128 v[{XQ}:{XQ+3}], v8 offset:{QP+512+16}')
    a(f'ds_read_b128 v[{XS}:{XS+3}], v8 offset:{QP+1024+16}')
    a(f'ds_read_b128 v[{Q}:{Q+3}], v8 offset:{QP+1536+16}')
    a(f'ds_read_b64 v[10:11], v9 offset:{GU}')
    a(f'''
    s_cmp_lg_u32 s3, 0
    s_cbranch_scc1 L_noat
    s_lshl_b32 s97, s76, 2
    v_mov_b32 v12, 1
    s_mov_b64 exec, 1
    buffer_atomic_add v12, off, s[64:67], s97 sc1
    s_mov_b64 exec, -1
    ''')
    a.label('L_noat')
    a(f'''
    s_waitcnt lgkmcnt(5)
    v_pk_add_f32 v[{T}:{T+1}], v[{T}:{T+1}], v[{T+4}:{T+5}]
    v_pk_add_f32 v[{T+2}:{T+3}], v[{T+2}:{T+3}], v[{T+6}:{T+7}]
    v_pk_add_f32 v[{T+8}:{T+9}], v[{T+8}:{T+9}], v[{T+12}:{T+13}]
    v_pk_add_f32 v[{T+10}:{T+11}], v[{T+10}:{T+11}], v[{T+14}:{T+15}]
    v_pk_add_f32 v[{ACC}:{ACC+1}], v[{T}:{T+1}], v[{T+8}:{T+9}]
    v_pk_add_f32 v[{ACC+2}:{ACC+3}], v[{T+2}:{T+3}], v[{T+10}:{T+11}]
    s_waitcnt lgkmcnt(1)
    v_pk_add_f32 v[{ACC+4}:{ACC+5}], v[{ACC+4}:{ACC+5}], v[{XQ}:{XQ+1}]
    v_pk_add_f32 v[{ACC+6}:{ACC+7}], v[{ACC+6}:{ACC+7}], v[{XQ+2}:{XQ+3}]
    v_pk_add_f32 v[{XS}:{XS+1}], v[{XS}:{XS+1}], v[{Q}:{Q+1}]
    v_pk_add_f32 v[{XS+2}:{XS+3}], v[{XS+2}:{XS+3}], v[{Q+2}:{Q+3}]
    v_pk_add_f32 v[{ACC+4}:{ACC+5}], v[{ACC+4}:{ACC+5}], v[{XS}:{XS+1}]
    v_pk_add_f32 v[{ACC+6}:{ACC+7}], v[{ACC+6}:{ACC+7}], v[{XS+2}:{XS+3}]
    ''')
    rscatter(ACC)
    a(f'''
    v_cvt_pk_bf16_f32 v{Q}, v{ACC}, v{ACC+1}
    v_mov_b32 v{Q+1}, v{Q}
    v_permlane16_swap_b32 v{Q}, v{Q+1}
    v_mov_b32 v{Q+2}, v{Q}
    v_mov_b32 v{Q+3}, v{Q+1}
    v_permlane32_swap_b32 v{Q}, v{Q+2}
    v_permlane32_swap_b32 v{Q+1}, v{Q+3}
    s_waitcnt lgkmcnt(0)
    v_add_f32_dpp v10, v10, v10 quad_perm:[1,0,3,2] row_mask:0xf bank_mask:0xf
    v_add_f32_dpp v11, v11, v11 quad_perm:[1,0,3,2] row_mask:0xf bank_mask:0xf
    v_add_f32_dpp v10, v10, v10 quad_perm:[2,3,0,1] row_mask:0xf bank_mask:0xf
    v_add_f32_dpp v11, v11, v11 quad_perm:[2,3,0,1] row_mask:0xf bank_mask:0xf
    v_add_f32_dpp v10, v10, v10 row_half_mirror row_mask:0xf bank_mask:0xf
    v_add_f32_dpp v11, v11, v11 row_half_mirror row_mask:0xf bank_mask:0xf
    v_readlane_b32 s82, v10, 0           ; gate0
    v_readlane_b32 s83, v11, 0           ; gate1
    v_readlane_b32 s84, v10, 8           ; up0
    v_readlane_b32 s85, v11, 8           ; up1
    v_mov_b32 v12, {f2u(-LOG2E):#x}
    v_mul_f32 v10, s82, v12
    v_mul_f32 v11, s83, v12
    v_exp_f32 v10, v10
    v_exp_f32 v11, v11
    v_add_f32 v10, 1.0, v10
    v_add_f32 v11, 1.0, v11
    v_rcp_f32 v10, v10
    v_rcp_f32 v11, v11
    v_mul_f32 v10, s82, v10
    v_mul_f32 v11, s83, v11
    v_mul_f32 v10, s84, v10
    v_mul_f32 v11, s85, v11
    v_mul_f32 v10, s92, v10
    v_mul_f32 v11, s92, v11
    s_waitcnt vmcnt(16)
    ''')
    for d in range(4):
        a(f'v_lshlrev_b32 v{T+2*d}, 16, v{W2+d}'); a(f'v_and_b32 v{T+2*d+1}, s86, v{W2+d}')
        a(f'v_lshlrev_b32 v{T+8+2*d}, 16, v{W2+4+d}'); a(f'v_and_b32 v{T+8+2*d+1}, s86, v{W2+4+d}')
    for d in range(4):
        a(f'v_pk_mul_f32 v[{T+2*d}:{T+2*d+1}], v[{T+2*d}:{T+2*d+1}], v[10:11] op_sel_hi:[1,0]')
    for d in range(4):
        a(f'v_pk_fma_f32 v[{T+2*d}:{T+2*d+1}], v[{T+8+2*d}:{T+8+2*d+1}], v[10:11], v[{T+2*d}:{T+2*d+1}] op_sel:[0,1,0] op_sel_hi:[1,1,1]')
    a(f'''
    v_lshlrev_b32 v13, 5, v4
    s_mul_i32 s97, s3, {BS}
    s_add_u32 s97, s97, {BIG}
    v_add_u32 v13, s97, v13
    ds_write_b128 v13, v[{T}:{T+3}]
    ds_write_b128 v13, v[{T+4}:{T+7}] offset:16
    v_mov_b32 v{M}, 0xff800000
    v_mov_b32 v{Lr}, 0
    ''')
    for i in range(8): a(f'v_mov_b32 v{ACC+i}, 0')
    a(f'''
    s_mov_b32 s88, {f2u(CS):#x}
    s_mov_b32 s89, {f2u(-CS):#x}
    s_waitcnt lgkmcnt(0)
    s_barrier
    s_cmp_lt_u32 s3, 8
    s_cbranch_scc1 L_nof
    ''')
    def piece_reduce(off):
        for i in range(4): a(f'ds_read_b128 v[{T+4*i}:{T+4*i+3}], v3 offset:{BS*i}')
        a(f'''
        s_waitcnt lgkmcnt(2)
        v_pk_add_f32 v[{T}:{T+1}], v[{T}:{T+1}], v[{T+4}:{T+5}]
        v_pk_add_f32 v[{T+2}:{T+3}], v[{T+2}:{T+3}], v[{T+6}:{T+7}]
        s_waitcnt lgkmcnt(0)
        v_pk_add_f32 v[{T+8}:{T+9}], v[{T+8}:{T+9}], v[{T+12}:{T+13}]
        v_pk_add_f32 v[{T+10}:{T+11}], v[{T+10}:{T+11}], v[{T+14}:{T+15}]
        v_pk_add_f32 v[{T}:{T+1}], v[{T}:{T+1}], v[{T+8}:{T+9}]
        v_pk_add_f32 v[{T+2}:{T+3}], v[{T+2}:{T+3}], v[{T+10}:{T+11}]
        ''')
        for i in range(4): a(f'v_add_f32_dpp v{T+i}, v{T+i}, v{T+i} quad_perm:[1,0,3,2] row_mask:0xf bank_mask:0xf')
        for i in range(4): a(f'v_add_f32_dpp v{T+i}, v{T+i}, v{T+i} quad_perm:[2,3,0,1] row_mask:0xf bank_mask:0xf')
        a(f'''
        s_mov_b32 exec_lo, 0x11111111
        s_mov_b32 exec_hi, 0x11111111
        buffer_store_dwordx4 v[{T}:{T+3}], v2, s[60:63], 0 offen offset:{off} sc1
        s_mov_b64 exec, -1
        s_nop 1
        ''')
    piece_reduce(32)
    a.label('L_nof')
    S=80; P=84; U=88; AL=10; NM=12; TM=11
    def body(kw, vw, reissue):
        if reissue: a('s_add_u32 s81, s81, 0x10000')
        for j in range(4):
            a(f's_waitcnt vmcnt({kw(j)})')
            for d in range(4):
                c='0' if d==0 else f'v{S+j}'
                a(f'v_dot2_f32_bf16 v{S+j}, v{KB+4*j+d}, v{Q+d}, {c}')
            if reissue: ldk(j)
        for rr in (8,4,2,1):
            for j in range(4): a(f'v_add_f32_dpp v{S+j}, v{S+j}, v{S+j} row_ror:{rr} row_mask:0xf bank_mask:0xf')
        a(f'''
        v_max3_f32 v{TM}, v{S}, v{S+1}, v{M}
        v_max3_f32 v{TM}, v{S+2}, v{S+3}, v{TM}
        v_sub_f32 v{AL}, v{M}, v{TM}
        v_mul_f32 v{NM}, s89, v{TM}
        v_mul_f32 v{AL}, s88, v{AL}
        v_mov_b32 v{M}, v{TM}
        v_exp_f32 v{AL}, v{AL}
        ''')
        for j in range(4): a(f'v_fma_f32 v{P+j}, v{S+j}, s88, v{NM}')
        for j in range(4): a(f'v_exp_f32 v{P+j}, v{P+j}')
        for d in range(4): a(f'v_pk_mul_f32 v[{ACC+2*d}:{ACC+2*d+1}], v[{ACC+2*d}:{ACC+2*d+1}], v[{AL}:{AL+1}] op_sel_hi:[1,0]')
        a(f'''
        v_fma_f32 v{Lr}, v{Lr}, v{AL}, v{P}
        v_add_f32 v{TM}, v{P+1}, v{P+2}
        v_add_f32 v{Lr}, v{Lr}, v{P+3}
        v_add_f32 v{Lr}, v{Lr}, v{TM}
        ''')
        for j in range(4):
            a(f's_waitcnt vmcnt({vw(j)})')
            u=U+8*(j&1)
            for d in range(4):
                a(f'v_lshlrev_b32 v{u+2*d}, 16, v{VB+4*j+d}'); a(f'v_and_b32 v{u+2*d+1}, s86, v{VB+4*j+d}')
            if reissue: ldv(j)
            pp=P+(j&~1); sel='op_sel:[0,1,0] op_sel_hi:[1,1,1]' if j&1 else 'op_sel_hi:[1,0,1]'
            for d in range(4):
                a(f'v_pk_fma_f32 v[{ACC+2*d}:{ACC+2*d+1}], v[{u+2*d}:{u+2*d+1}], v[{pp}:{pp+1}], v[{ACC+2*d}:{ACC+2*d+1}] {sel}')
    body(lambda j:15, lambda j:15, True)
    a('s_mov_b32 s80, 14')
    a.label('L_loop')
    body(lambda j:7, lambda j:7, True)
    a('''
    s_sub_u32 s80, s80, 1
    s_cmp_lg_u32 s80, 0
    s_cbranch_scc1 L_loop
    ''')
    body(lambda j:7-j, lambda j:3-j, False)
    a(f'''
    s_cmp_lg_u32 s3, 8
    s_cbranch_scc1 L_nocons0
    s_lshl_b32 s97, s76, 2
    s_lshl_b32 s96, s76, 10
    buffer_load_dword v14, off, s[64:67], s97 sc1
    buffer_load_dwordx4 v[{XQ}:{XQ+3}], v1, s[48:51], s96 offen
    buffer_load_dwordx4 v[{XS}:{XS+3}], v1, s[72:75], 0 offen
    ''')
    a.label('L_nocons0')
    a(f'''
    v_mov_b32 v{TM}, v{M}
    v_max_f32_dpp v{TM}, v{TM}, v{TM} row_bcast:15 row_mask:0xa bank_mask:0xf
    v_max_f32_dpp v{TM}, v{TM}, v{TM} row_bcast:31 row_mask:0xc bank_mask:0xf
    v_readlane_b32 s82, v{TM}, 63
    v_subrev_f32 v{AL}, s82, v{M}
    v_mul_f32 v{AL}, s88, v{AL}
    v_exp_f32 v{AL}, v{AL}
    v_mov_b32 v{M}, s82
    ''')
    for d in range(4): a(f'v_pk_mul_f32 v[{ACC+2*d}:{ACC+2*d+1}], v[{ACC+2*d}:{ACC+2*d+1}], v[{AL}:{AL+1}] op_sel_hi:[1,0]')
    a(f'v_mul_f32 v{Lr}, v{Lr}, v{AL}')
    rscatter(ACC)
    a(f'''
    v_add_f32_dpp v{Lr}, v{Lr}, v{Lr} row_bcast:15 row_mask:0xa bank_mask:0xf
    s_mul_i32 s97, s3, 520
    v_add_u32 v8, s97, v7                ; w*520 + c*32 + r*8
    v_add_f32_dpp v{Lr}, v{Lr}, v{Lr} row_bcast:31 row_mask:0xc bank_mask:0xf
    ds_write_b64 v8, v[{ACC}:{ACC+1}] offset:{QP}
    s_lshl_b32 s97, s3, 3
    v_mov_b32 v9, s97
    s_mov_b32 exec_lo, 0
    s_mov_b32 exec_hi, 0x80000000
    ds_write_b64 v9, v[{M}:{M+1}] offset:{ML}
    s_mov_b64 exec, -1
    v_mul_u32_u24 v8, 520, v6
    v_lshl_add_u32 v8, v5, 3, v8
    s_lshl_b32 s97, s3, 5
    v_add_u32 v8, s97, v8
    v_lshlrev_b32 v9, 3, v6
    ''')
    for k in range(32):
        a(f'v_lshlrev_b32 v{KB+k}, 16, v{WB+k}'); a(f'v_and_b32 v{WB+k}, s86, v{WB+k}')
    a(f'''
    s_waitcnt lgkmcnt(0)
    s_barrier
    ds_read_b64 v[{S}:{S+1}], v9 offset:{ML}
    ds_read_b64 v[{S+2}:{S+3}], v8 offset:{QP}
    s_waitcnt lgkmcnt(1)
    v_mov_b32 v{TM}, v{S}
    ''')
    for rr in (8,4,2,1): a(f'v_max_f32_dpp v{TM}, v{TM}, v{TM} row_ror:{rr} row_mask:0xf bank_mask:0xf')
    a(f'''
    v_sub_f32 v{AL}, v{S}, v{TM}
    v_mul_f32 v{AL}, s88, v{AL}
    v_exp_f32 v{AL}, v{AL}
    s_waitcnt lgkmcnt(0)
    v_mul_f32 v{S+1}, v{S+1}, v{AL}
    v_mul_f32 v{S+2}, v{S+2}, v{AL}
    v_mul_f32 v{S+3}, v{S+3}, v{AL}
    ''')
    for rr in (8,4,2,1):
        for i in (1,2,3): a(f'v_add_f32_dpp v{S+i}, v{S+i}, v{S+i} row_ror:{rr} row_mask:0xf bank_mask:0xf')
    a(f'''
    v_rcp_f32 v{AL}, v{S+1}
    v_log_f32 v{NM}, v{S+1}
    v_mul_f32 v{S+2}, v{S+2}, v{AL}
    v_mul_f32 v{S+3}, v{S+3}, v{AL}
    v_fma_f32 v{NM}, v{TM}, s88, v{NM}
    ''')
    for r in range(4):
        a(f'v_readlane_b32 s{4+2*r}, v{S+2}, {16*r}'); a(f'v_readlane_b32 s{5+2*r}, v{S+3}, {16*r}')
    a(f'''
    s_cmp_lg_u32 s3, 9
    s_cbranch_scc1 L_nolse
    s_mov_b64 exec, 1
    buffer_store_dword v{NM}, off, s[60:63], s101 sc1
    s_mov_b64 exec, -1
    ''')
    a.label('L_nolse')
    E=88; O=92
    for k in range(8):
        sp=4+(k&~1); sel='op_sel:[0,1,0] op_sel_hi:[1,1,1]' if k&1 else 'op_sel_hi:[1,0,1]'
        for (dst,src) in ((E,KB),(O,WB)):
            for d in (0,2):
                if k==0: a(f'v_pk_mul_f32 v[{dst+d}:{dst+d+1}], v[{src+d}:{src+d+1}], s[4:5] op_sel_hi:[1,0]')
                else: a(f'v_pk_fma_f32 v[{dst+d}:{dst+d+1}], v[{src+4*k+d}:{src+4*k+d+1}], s[{sp}:{sp+1}], v[{dst+d}:{dst+d+1}] {sel}')
    for d in range(4):
        a(f'v_mov_b32 v{96+2*d}, v{E+d}'); a(f'v_mov_b32 v{97+2*d}, v{O+d}')
    a(f'''
    ds_write_b128 v13, v[96:99]
    ds_write_b128 v13, v[100:103] offset:16
    s_waitcnt lgkmcnt(0)
    s_barrier
    s_cmp_ge_u32 s3, 8
    s_cbranch_scc1 L_cons
    ''')
    piece_reduce(0)
    a('s_endpgm')
    a.label('L_cons')
    a(f'''
    s_cmp_lg_u32 s3, 8
    s_cbranch_scc1 L_end
    ; gate g
    s_waitcnt vmcnt(0)
    v_dot2_f32_bf16 v10, v{XQ}, v{XS}, 0
    v_dot2_f32_bf16 v10, v{XQ+1}, v{XS+1}, v10
    v_dot2_f32_bf16 v10, v{XQ+2}, v{XS+2}, v10
    v_dot2_f32_bf16 v10, v{XQ+3}, v{XS+3}, v10
    s_lshl_b32 s96, s76, 6
    s_add_u32 s96, s96, s93
    s_lshl_b32 s96, s96, 12
    v_lshlrev_b32 v8, 6, v4
    s_lshl_b32 s95, s76, 8
    s_add_u32 s95, s95, 0x100000
    v_lshlrev_b32 v9, 2, v4
    s_lshl_b32 s97, s76, 2
    s_mov_b32 s80, 0x40000
    ''')
    a.label('L_cnt')
    a(f'''
    v_readfirstlane_b32 s94, v14
    s_cmp_ge_u32 s94, 64
    s_cbranch_scc1 L_poll
    buffer_load_dword v14, off, s[64:67], s97 sc1
    s_sub_u32 s80, s80, 1
    s_cmp_eq_u32 s80, 0
    s_waitcnt vmcnt(0)
    s_cbranch_scc0 L_cnt
    s_mov_b32 s80, 1
    ''')
    a.label('L_poll')
    a(f'''
    buffer_load_dwordx4 v[16:19], v8, s[60:63], s96 offen sc1
    buffer_load_dwordx4 v[20:23], v8, s[60:63], s96 offen offset:16 sc1
    buffer_load_dword v32, v9, s[60:63], s95 offen sc1
    buffer_load_dwordx4 v[24:27], v8, s[60:63], s96 offen offset:32 sc1
    buffer_load_dwordx4 v[28:31], v8, s[60:63], s96 offen offset:48 sc1
    s_sub_u32 s80, s80, 1
    s_waitcnt vmcnt(0)
    v_pk_add_f32 v[34:35], v[16:17], v[18:19]
    v_pk_add_f32 v[36:37], v[20:21], v[22:23]
    v_pk_add_f32 v[38:39], v[24:25], v[26:27]
    v_pk_add_f32 v[40:41], v[28:29], v[30:31]
    v_pk_add_f32 v[34:35], v[34:35], v[36:37]
    v_pk_add_f32 v[38:39], v[38:39], v[40:41]
    v_pk_add_f32 v[34:35], v[34:35], v[38:39]
    v_add_f32 v34, v34, v35
    v_add_f32 v34, v34, v32
    v_cmp_u_f32 vcc, v34, v34
    s_cmp_eq_u32 s80, 0
    s_cbranch_scc1 L_done
    s_and_b64 exec, vcc, vcc
    s_cbranch_scc1 L_poll
    ''')
    a.label('L_done')
    a(f'''
    s_mov_b64 exec, -1
    s_nop 4
    ''')
    for rr in (8,4,2,1): a(f'v_add_f32_dpp v10, v10, v10 row_ror:{rr} row_mask:0xf bank_mask:0xf')
    a(f'''
    v_add_f32_dpp v10, v10, v10 row_bcast:15 row_mask:0xa bank_mask:0xf
    v_add_f32_dpp v10, v10, v10 row_bcast:31 row_mask:0xc bank_mask:0xf
    v_sub_f32_dpp v33, v32, v32 quad_perm:[1,0,3,2] row_mask:0xf bank_mask:0xf
    v_readlane_b32 s82, v10, 63
    v_exp_f32 v33, v33
    v_mov_b32 v12, {f2u(-LOG2E):#x}
    v_mul_f32 v10, s82, v12
    v_add_f32 v33, 1.0, v33
    v_exp_f32 v10, v10
    v_rcp_f32 v33, v33
    v_add_f32 v10, 1.0, v10
    v_rcp_f32 v10, v10                   ; g
    v_mul_f32 v34, v33, v10              ; g*w
    v_sub_f32 v35, 1.0, v10              ; 1-g
    ''')
    for d in range(4): a(f'v_pk_mul_f32 v[{16+2*d}:{17+2*d}], v[{16+2*d}:{17+2*d}], v[34:35] op_sel_hi:[1,0]')
    for d in range(4): a(f'v_pk_fma_f32 v[{16+2*d}:{17+2*d}], v[{24+2*d}:{25+2*d}], v[34:35], v[{16+2*d}:{17+2*d}] op_sel:[0,1,0] op_sel_hi:[1,1,1]')
    rscatter(16)
    for rr in (8,4,2,1):
        for i in range(2): a(f'v_add_f32_dpp v{16+i}, v{16+i}, v{16+i} row_ror:{rr} row_mask:0xf bank_mask:0xf')
    a(f'''
    v_cvt_pk_bf16_f32 v16, v16, v17
    s_lshl_b32 s96, s76, 10
    s_lshl_b32 s95, s93, 4
    s_add_u32 s96, s96, s95
    v_lshlrev_b32 v8, 2, v5
    s_mov_b32 exec_lo, 0x00010001
    s_mov_b32 exec_hi, 0x00010001
    buffer_store_dword v16, v8, s[68:71], s96 offen
    ''')
    a.label('L_end')
    a('s_endpgm')
    a.raw('.section .rodata,"a"'); a.raw('.p2align 6'); a.raw(f'.amdhsa_kernel {NAME}_kernel')
    for l in ('next_free_vgpr 128','next_free_sgpr 102','accum_offset 128','group_segment_fixed_size 0','kernarg_size 104','user_sgpr_count 2','user_sgpr_kernarg_segment_ptr 1','system_sgpr_workgroup_id_x 1'):
        a.raw('  .amdhsa_'+l)
    a.raw('.end_amdhsa_kernel')
    return a.text()

if __name__=='__main__':
    out=sys.argv[1] if len(sys.argv)>1 else f'cdna_kernels/{NAME}.s'
    open(out,'w').write(gen())
```
